```python
import torch

def _softmax(x, axis=-1):
    return torch.softmax(x, dim=axis)
def _gelu(x):
    return torch.nn.functional.gelu(x, approximate="tanh")
def _silu(x):
    return torch.nn.functional.silu(x)
def _sigmoid(x):
    return torch.sigmoid(x)
def _layernorm(x, axis=-1, eps=1e-5):
    m = x.mean(dim=axis, keepdim=True)
    v = x.var(dim=axis, keepdim=True, unbiased=False)
    return (x - m) / torch.sqrt(v + eps)
def _scatter_add(tgt, idx, src, axis=0):
    return tgt.clone().index_add_(axis, idx, src)
def _segment_sum(src, seg, n):
    out = torch.zeros((n,) + src.shape[1:], dtype=src.dtype)
    return out.index_add_(0, seg, src)
def _pad(x, pw):
    flat = tuple(v for pair in reversed(pw) for v in pair)
    return torch.nn.functional.pad(x, flat)

kernel_name = 'gated_mix__ssm_conv_h3__swiglu_ffn__prompt'

def setup_inputs():

    _w = (lambda a: (lambda t: t.to(torch.bfloat16) if t.is_floating_point() else t)(torch.as_tensor(a)))
    def _A_setup():
        B, S, D = 1, 2048, 1024
        ks = 4
        return {
            "q": _w((lambda *s: torch.randn(*s, dtype=torch.bfloat16) * 0.05)(B, S, D)),
            "k": _w((lambda *s: torch.randn(*s, dtype=torch.bfloat16) * 0.4)(B, S, D)),
            "v": _w((lambda *s: torch.randn(*s, dtype=torch.bfloat16) * 0.4)(B, S, D)),
            "shift_k": _w((lambda *s: torch.randn(*s, dtype=torch.bfloat16) * 0.4)(D, ks) * 0.5),
            "ssm_k": _w((lambda *s: torch.randn(*s, dtype=torch.bfloat16) * 0.4)(D, S) * (1.0 / S ** 0.5)),
            "ssm_D": _w((lambda *s: torch.randn(*s, dtype=torch.bfloat16) * 0.4)(D)),
        }
    _A_in = _A_setup()

    def _B_setup():
        B, S, D, F = 1, 2048, 1024, 3584
        return {
            "x": _w((lambda *s: torch.randn(*s, dtype=torch.bfloat16) * 0.05)(B, S, D)),
            "w_gate": _w((lambda *s: torch.randn(*s, dtype=torch.bfloat16) * 0.05)(D, F)),
            "w_up": _w((lambda *s: torch.randn(*s, dtype=torch.bfloat16) * 0.05)(D, F)),
            "w_down": _w((lambda *s: torch.randn(*s, dtype=torch.bfloat16) * 0.05)(F, D)),
        }
    _B_in = _B_setup()

    return {
        "A_q": _A_in["q"],
        "A_k": _A_in["k"],
        "A_v": _A_in["v"],
        "A_shift_k": _A_in["shift_k"],
        "A_ssm_k": _A_in["ssm_k"],
        "A_ssm_D": _A_in["ssm_D"],
        "B_x": _B_in["x"],
        "B_w_gate": _B_in["w_gate"],
        "B_w_up": _B_in["w_up"],
        "B_w_down": _B_in["w_down"],
        "gate_w": _w((lambda *s: torch.randn(*s, dtype=torch.bfloat16) * 0.05)(1024) * 16.0),
    }

def reference(A_q, A_k, A_v, A_shift_k, A_ssm_k, A_ssm_D, B_x, B_w_gate, B_w_up, B_w_down, gate_w):
    def _A_ref(q, k, v, shift_k, ssm_k, ssm_D):
        B, S, D = q.shape
        ks = shift_k.shape[-1]
        k_pad = _pad(k, ((0, 0), (ks - 1, 0), (0, 0)))
        k_shift = torch.zeros_like(k)
        for t in range(ks):
            k_shift = k_shift + k_pad[:, t:t + S, :] * shift_k[:, ks - 1 - t][None, None, :]
        kv = k_shift * v
        L = 2 * S
        kv_pad = _pad(kv, ((0, 0), (0, S), (0, 0)))
        kf_pad = _pad(ssm_k, ((0, 0), (0, S)))
        kv_f = (lambda x, axes=(-2,-1): torch.fft.rfft2(x.float(), dim=axes))(kv_pad[:, None, :, :], axes=(1, 2))
        kf_f = (lambda x, axes=(-2,-1): torch.fft.rfft2(x.float(), dim=axes))(kf_pad[:, None, :], axes=(1, 2))
        kf_f = (lambda x, *d: x.permute(*d))(kf_f, 1, 2, 0)
        y_f = kv_f * kf_f[None, :, :, :]
        y = (lambda x, s, axes=(-2,-1): torch.fft.irfft2(x, s=s, dim=axes).to(torch.bfloat16))(y_f, (1, L), axes=(1, 2))[:, 0, :S, :]
        y = y + kv * ssm_D[None, None, :]
        return q * y

    def _B_ref(x, w_gate, w_up, w_down):
        g = _silu(x @ w_gate)
        u = x @ w_up
        return (g * u) @ w_down

    x = A_q
    g = _sigmoid((x * gate_w).sum(-1, keepdims=True))
    a = _A_ref(x, A_k, A_v, A_shift_k, A_ssm_k, A_ssm_D)
    b = _B_ref(x, B_w_gate, B_w_up, B_w_down)
    return g * a + (1 - g) * b
```

```python
import re

TRANS = ("v_exp_f32", "v_log_f32", "v_rcp_f32", "v_rsq_f32", "v_sqrt_f32", "v_sin_f32", "v_cos_f32")

def regs_of(tok):
    tok = tok.strip().lstrip("-")
    if tok.startswith("abs(") or tok.startswith("|"):
        tok = tok.replace("abs(", "").replace(")", "").replace("|", "")
    m = re.fullmatch(r"([vas])\[(\d+):(\d+)\]", tok)
    if m:
        return {(m.group(1), i) for i in range(int(m.group(2)), int(m.group(3)) + 1)}
    m = re.fullmatch(r"([vas])(\d+)", tok)
    if m:
        return {(m.group(1), int(m.group(2)))}
    if tok == "vcc": return {("s", "vcc")}
    if tok == "m0": return {("s", "m0")}
    if tok == "exec": return {("s", "exec")}
    return set()

class Ins:
    def __init__(self, text):
        self.text = text
        t = text.split(";")[0].strip()
        self.label = t.endswith(":")
        self.op = t.split()[0] if t else ""
        rest = t[len(self.op):].strip()
        parts = [p.strip() for p in re.split(r",\s*(?![^\[]*\])", rest)] if rest else []
        ops = []
        self.mods = ""
        for i, p in enumerate(parts):
            sp = p.split()
            if not sp: continue
            ops.append(sp[0])
            if len(sp) > 1: self.mods += " " + " ".join(sp[1:])
        self.ops = ops
        op = self.op
        self.kind = "other"
        self.w = set(); self.r = set()
        R = lambda idx: set().union(*[regs_of(ops[i]) for i in idx if i < len(ops)]) if idx else set()
        n = len(ops)
        if self.label or op.startswith("."):
            self.kind = "none"
        elif op.startswith("v_mfma"):
            self.kind = "mfma"; self.w = R([0]); self.ra = R([1, 2]); self.rc = R([3]); self.r = self.ra | self.rc
            self.passes = 4 if "16x16x32" in op else 8
        elif op.startswith("v_cmp"):
            self.kind = "valu"; self.w = R([0]); self.r = R(range(1, n))
        elif op.startswith("v_readfirstlane") or op.startswith("v_readlane"):
            self.kind = "valu"; self.w = R([0]); self.r = R(range(1, n)); self.rl = True
        elif op.startswith("v_permlane"):
            self.kind = "valu"; self.w = R([0, 1]); self.r = R([0, 1]); self.perm = True
        elif op.startswith("v_"):
            self.kind = "valu"; self.w = R([0]); self.r = R(range(1, n))
            if op.startswith(("v_fmac", "v_pk_fmac", "v_dot")): self.r |= self.w
            if op.startswith(("v_add_co", "v_sub_co", "v_addc_co")): self.w |= R([1])
            if op.startswith("v_cndmask") and n == 3: self.r |= {("s", "vcc")}
        elif op.startswith("ds_read") :
            self.kind = "ds"; self.w = R([0]); self.r = R([1])
        elif op.startswith("ds_add_rtn") or op.startswith("ds_bpermute") or op.startswith("ds_swizzle"):
            self.kind = "ds"; self.w = R([0]); self.r = R(range(1, n))
        elif op.startswith("ds_"):
            self.kind = "ds"; self.r = R(range(n))
        elif op.startswith("buffer_load") and " lds" in (" " + self.mods + " ").replace("  ", " "):
            self.kind = "dma"; self.r = R(range(n)) | {("s", "m0")}
        elif op.startswith("buffer_load") or op.startswith("global_load"):
            self.kind = "vmem"; self.w = R([0]); self.r = R(range(1, n))
        elif op.startswith("buffer_store") or op.startswith("global_store") or op.startswith("buffer_atomic") or op.startswith("global_atomic"):
            self.kind = "vmem"; self.r = R(range(n)); self.store = True
            self.wide = R([0]) if ("x4" in op or "x3" in op) and op.startswith("buffer") else set()
        elif op.startswith("s_nop"):
            self.kind = "nop"; self.states = int(ops[0], 0) + 1
        elif op.startswith("s_"):
            self.kind = "salu"
            if op.startswith(("s_cmp", "s_cbranch", "s_branch", "s_waitcnt", "s_barrier", "s_endpgm", "s_setprio", "s_sleep", "s_bitcmp")):
                self.r = R(range(n))
            else:
                self.w = R([0]); self.r = R(range(1, n))
        self.dpp = "row_" in self.mods or "quad_perm" in self.mods or "wave_" in self.mods
        self.trans = op.replace("_e32", "").replace("_e64", "") in TRANS

def need(p, c):
    n = 0
    vw = {x for x in p.w if x[0] in "va"}
    sw = {x for x in p.w if x[0] == "s"}
    if p.kind == "valu":
        if c.kind == "mfma" and vw & c.r: n = max(n, 2)
        if c.kind == "valu":
            if p.trans and not c.trans and vw & c.r: n = max(n, 1)
            if getattr(c, "perm", False) and vw & c.r: n = max(n, 2)
            if c.dpp and vw & c.r: n = max(n, 2)
            if getattr(c, "rl", False) and vw & c.r: n = max(n, 1)
            if sw & c.r: n = max(n, 4 if getattr(c, "rl", False) else 2)
            if "op_sel" in p.mods and not p.op.startswith("v_pk") and vw & (c.r | c.w): n = max(n, 1)
            if "dst_sel" in p.mods and vw & (c.r | c.w): n = max(n, 1)
        if c.kind in ("vmem", "dma") and sw & c.r: n = max(n, 5)
    if p.kind == "mfma":
        ps = p.passes
        if c.kind == "mfma":
            if p.w & c.ra: n = max(n, {4: 8, 8: 12}[ps])
            if p.w & c.rc and not (p.w == c.rc and c.passes == ps): n = max(n, {4: 6, 8: 10}[ps])
        elif c.kind in ("valu", "vmem", "ds", "dma"):
            if p.w & (c.r | c.w): n = max(n, {4: 8, 8: 12}[ps])
            if c.kind == "valu" and p.rc & c.w: n = max(n, {4: 3, 8: 7}[ps])
    if p.kind == "salu" and ("s", "m0") in p.w and c.kind == "dma": n = max(n, 1)
    if getattr(p, "store", False) and p.wide & c.w: n = max(n, 2 if c.kind == "valu" else 1)
    return n

class Asm:
    def __init__(self):
        self.lines = []
    def __call__(self, text):
        for t in text.split("\n"):
            if t.strip(): self.lines.append(t.strip())
    def label(self, l): self.lines.append(l + ":")
    def c(self, t): self.lines.append("; " + t)

def fix_hazards(lines, window=24):
    out = []; hist = []
    for t in lines:
        if t.startswith(";"):
            out.append(t); continue
        ins = Ins(t)
        if ins.kind == "none":
            out.append(t); continue
        dist = 0; req = 0
        for p in reversed(hist[-window:]):
            k = need(p, ins) - dist
            req = max(req, k)
            dist += p.states if p.kind == "nop" else 1
        if req > 0:
            while req > 0:
                k = min(req, 16)
                nop = f"s_nop {k-1}"
                out.append(nop); hist.append(Ins(nop)); req -= k
        out.append(t); hist.append(ins)
    return out

def check_seq(lines, window=24):
    probs = []; hist = []
    for t in lines:
        if t.startswith(";"): continue
        ins = Ins(t)
        if ins.kind == "none": continue
        dist = 0
        for p in reversed(hist[-window:]):
            if need(p, ins) - dist > 0: probs.append((p.text, ins.text))
            dist += p.states if p.kind == "nop" else 1
        hist.append(ins)
    return probs

def check_backedges(lines):
    pos = {t[:-1]: i for i, t in enumerate(lines) if t.endswith(":") and not t.startswith(";")}
    probs = []
    for i, t in enumerate(lines):
        m = re.match(r"s_c?branch\w*\s+(\S+)", t)
        if m and m.group(1) in pos:
            j = pos[m.group(1)]
            seq = lines[max(0, i-40): i+1] + lines[j: j+40]
            probs += check_seq(seq)
    return probs
```

```python
from asmb import *

WS_H   = 0x0000000
WS_UR  = 0x1000000
WS_Y2  = 0x1400000
WS_G   = 0x1800000
WS_FLG = 0x1810000
WS_PROF = 0x1900000
WS_END = 0x1a00000
OOB = 0x7F000000
NLOG2E = 0xBFB8AA3B

class Q:
    def __init__(self, a, name, maxn):
        self.a, self.name, self.maxn, self.q = a, name, maxn, []
    def push(self, tag): self.q.append(tag)
    def need(self, tags):
        idx = [i for i, t in enumerate(self.q) if t in tags]
        if not idx: return None
        return min(len(self.q) - 1 - max(idx), self.maxn)
    def done_upto(self, n):
        self.q = self.q[len(self.q) - n:] if n > 0 else []
    def wait(self, *tags):
        n = self.need(tags)
        if n is None: return
        self.a(f"s_waitcnt {self.name}({n})")
        self.done_upto(n)
    def drain(self):
        self.a(f"s_waitcnt {self.name}(0)"); self.q = []

def srd(a, d, lo, size):
    a(f"s_mov_b32 s{d}, s{lo}\ns_mov_b32 s{d+1}, s{lo+1}\ns_mov_b32 s{d+2}, {hex(size)}\ns_mov_b32 s{d+3}, 0x00020000")
def vr(b, n=4): return f"v[{b}:{b+n-1}]"
def ar(b, n=4): return f"a[{b}:{b+n-1}]"
def unpack(a, lo, hi, src):
    a(f"v_lshlrev_b32 v{lo}, 16, v{src}\nv_and_b32 v{hi}, 0xffff0000, v{src}")

def stamp(a, opt, i):
    if opt.get("prof"): a(f"s_memrealtime s[{80+2*i}:{81+2*i}]")
def stamp_flush(a, opt, n, srd_ws, wave_s, region, nw):
    if not opt.get("prof"): return
    a("s_waitcnt vmcnt(0) lgkmcnt(0)")
    a(f"s_memrealtime s[{80+2*n}:{81+2*n}]\ns_waitcnt lgkmcnt(0)")
    a(f"s_mul_i32 s78, s2, {nw}\ns_add_u32 s78, s78, s{wave_s}\ns_lshl_b32 s78, s78, 6\ns_add_u32 s78, s78, {hex(WS_PROF + region)}")
    a("v_mov_b32 v1, 0")
    a(f"s_sub_u32 s98, s98, s96\nv_mov_b32 v2, s98\nbuffer_store_dword v2, v1, {srd_ws}, s78 offen offset:60")
    for i in range(n+1):
        a(f"v_mov_b32 v2, s{80+2*i}\nbuffer_store_dword v2, v1, {srd_ws}, s78 offen offset:{4*i}")
SLOT = 30720
NSLOT = 5
ACC0 = 32
def acc(mat, tau, i): return ACC0 + ((mat*7 + tau)*4 + i)*4
def wbuf(w): return (w % 7)*4
def xbuf(par, i): return 28 + par*16 + i*4
XOFF, WOFF, RLANE, RBASE = 4, 8, 12, 16
S_W, S_MB, S_NB, S_X, S_WO, S_DSLOT, S_RSLOT, S_IT, S_XL, S_WL, S_TL, S_XM, S_WM, S_TM = 32, 33, 34, 35, 36, 37, 38, 39, 40, 41, 42, 43, 64, 65
S_XE, S_WE = 66, 67

def k1_dma(a, which):
    fl = K1OPT.get("wflags", "")
    if which < 4:
        a(f"s_add_u32 m0, s{S_XM}, {which*1024}")
        return f"buffer_load_dwordx4 v{XOFF+which}, s[4:7], s{S_XE} offen lds"
    if which < 7:
        a(f"s_add_u32 m0, s{S_WM}, {(which-4)*1024}")
        return f"buffer_load_dwordx4 v{WOFF+which-4}, s[8:11], s{S_WE} offen {fl} lds"
    a(f"s_mov_b32 m0, s{S_TM}\ns_mov_b64 exec, s[44:45]")
    return f"buffer_load_dwordx4 v{WOFF+3}, s[8:11], s{S_WE} offen {fl} lds\ns_mov_b64 exec, -1"

def k1_dma_setup(a):
    a(f"s_add_u32 s{S_XM}, s{S_DSLOT}, s{S_XL}\ns_add_u32 s{S_WM}, s{S_DSLOT}, s{S_WL}\ns_add_u32 s{S_TM}, s{S_DSLOT}, s{S_TL}")
def k1_dma_advance(a):
    if K1OPT.get("fake") == 1:
        a(f"s_add_u32 s{S_X}, s{S_X}, 0\ns_add_u32 s{S_WO}, s{S_WO}, 0")
    elif K1OPT.get("fake") == 2:
        a(f"s_add_u32 s79, s79, 1\ns_and_b32 s79, s79, 3\ns_lshl_b32 s{S_X}, s79, 6\ns_add_u32 s{S_X}, s{S_X}, s77\ns_mul_i32 s{S_WO}, s79, {32*7168}")
    else:
        a(f"s_add_u32 s{S_X}, s{S_X}, 64\ns_add_u32 s{S_WO}, s{S_WO}, {32*7168}")
    a(f"s_add_u32 s{S_DSLOT}, s{S_DSLOT}, {SLOT}\ns_cmp_ge_u32 s{S_DSLOT}, {SLOT*NSLOT}\ns_cselect_b32 s{S_DSLOT}, 0, s{S_DSLOT}")

def w_read(a, lg, w, tag):
    mat, tau = divmod(w, 7)
    reg = 16384 + mat*7168
    b = wbuf(w)
    if tau < 6:
        base, o1 = RBASE + 1 + (tau & 1), reg + 64*(tau >> 1); o2 = o1 + 3072
    else:
        base, o1 = RBASE + 3, reg + 6144; o2 = o1 + 512
    return [(f"ds_read_b64_tr_b16 {ar(b,2)}, v{base} offset:{o1}", tag), (f"ds_read_b64_tr_b16 {ar(b+2,2)}, v{base} offset:{o2}", tag)]
def x_read(par, i, tag):
    return [(f"ds_read_b128 {ar(xbuf(par,i))}, v{RBASE} offset:{i*1024}", tag)]

def k1_step(a, lg, par, first, carry):
    slots = {i: [] for i in range(56)}
    for w in range(5, 14):
        r = w_read(a, lg, w, ("W", w, par))
        slots[4*(w-5)].append(("ds",) + r[0]); slots[4*(w-5)+1].append(("ds",) + r[1])
    pos = [2, 7, 13, 19, 25, 31]
    for p, d in zip(pos, carry): slots[p].append(("dma", d))
    slots[33].append(("raw", lambda: k1_dma_advance(a)))
    def rb():
        a(f"s_add_u32 s{S_RSLOT}, s{S_RSLOT}, {SLOT}\ns_cmp_ge_u32 s{S_RSLOT}, {SLOT*NSLOT}\ns_cselect_b32 s{S_RSLOT}, 0, s{S_RSLOT}")
    slots[34].append(("raw", rb))
    for j in range(4):
        slots[35+j].append(("raw", lambda j=j: a(f"v_add_u32 v{RBASE+j}, s{S_RSLOT}, v{RLANE+j}")))
    def sel():
        a(f"s_cmp_lt_u32 s{S_WO}, {32*32*7168}\ns_cselect_b32 s{S_XE}, s{S_X}, s68\ns_cselect_b32 s{S_WE}, s{S_WO}, s68")
    slots[36].append(("raw", sel))
    slots[37].append(("raw", lambda: k1_dma_setup(a)))
    def bar():
        a("s_waitcnt vmcnt(24) lgkmcnt(0)" if not K1OPT.get("novm") else "s_waitcnt lgkmcnt(0)")
        if not K1OPT.get("nobar"): a("s_barrier")
        lg.q = []
    slots[39].append(("raw", bar))
    nx = par ^ 1
    seq = x_read(nx, 0, ("X", 0, nx)) + w_read(a, lg, 0, ("W", 0, nx)) + x_read(nx, 1, ("X", 1, nx)) + x_read(nx, 2, ("X", 2, nx)) + x_read(nx, 3, ("X", 3, nx))
    seq += w_read(a, lg, 1, ("W", 1, nx)) + w_read(a, lg, 2, ("W", 2, nx)) + w_read(a, lg, 3, ("W", 3, nx)) + w_read(a, lg, 4, ("W", 4, nx))
    at = [39, 40, 41, 42, 43, 44, 45, 46, 47, 48, 49, 50, 52, 53]
    for p, r in zip(at, seq): slots[p].append(("ds",) + r)
    slots[51].append(("dma", 0)); slots[54].append(("dma", 4))
    newcarry = [1, 5, 2, 6, 3, 7]
    for n in range(56):
        w, x = divmod(n, 4)
        if w & 1: x = 3 - x
        mat, tau = divmod(w, 7)
        lg.wait(("W", w, par), ("X", x, par))
        d = vr(acc(mat, tau, x))
        a(f"v_mfma_f32_16x16x32_bf16 {d}, {ar(wbuf(w))}, {ar(xbuf(par, x))}, {'0' if first else d}")
        for it in slots[n]:
            if it[0] == "ds": a(it[1]); lg.push(it[2])
            elif it[0] == "dma":
                if not K1OPT.get("nodma"): a(k1_dma(a, it[1]))
            else: it[1]()
    return newcarry

def k1_prep_loads(a):
    a("v_and_b32 v20, 15, v0\nv_lshrrev_b32 v21, 4, v0")
    a("s_and_b32 s46, s2, 15\ns_lshr_b32 s47, s2, 4")
    a("s_lshl_b32 s46, s46, 6\ns_lshl_b32 s47, s47, 7")
    a("v_lshl_add_u32 v22, v20, 2, s46")
    a("v_lshl_add_u32 v23, v21, 3, s47")
    a("v_lshlrev_b32 v24, 11, v23\nv_lshl_add_u32 v24, v22, 1, v24")
    a("v_subrev_u32 v25, 0x1800, v24\nv_cmp_eq_u32 vcc, 0, v23\nv_mov_b32 v26, 0x7f000000")
    a("v_cndmask_b32 v25, v25, v26, vcc")
    for r in range(8): a(f"s_movk_i32 s{88+r}, {r*2048}")
    for r in range(3): a(f"buffer_load_dwordx2 {vr(32+2*r,2)}, v25, s[16:19], s{88+r} offen")
    for r in range(8): a(f"buffer_load_dwordx2 {vr(38+2*r,2)}, v24, s[16:19], s{88+r} offen")
    for r in range(8): a(f"buffer_load_dwordx2 {vr(54+2*r,2)}, v24, s[20:23], s{88+r} offen")
    a("v_lshlrev_b32 v26, 3, v22")
    a(f"buffer_load_dwordx4 {vr(70)}, v26, s[24:27], 0 offen\nbuffer_load_dwordx4 {vr(74)}, v26, s[24:27], 0 offen offset:16")
    a(f"s_lshl_b32 s46, s2, 3\ns_lshl_b32 s47, s{S_W}, 1\ns_add_u32 s69, s46, s47\ns_lshl_b32 s46, s69, 11")
    a("v_lshlrev_b32 v27, 4, v2")
    for r in range(2):
        for h in range(2):
            a(f"buffer_load_dwordx4 {vr(80+8*r+4*h)}, v27, s[4:7], s46 offen offset:{r*2048+h*1024}")
    a(f"buffer_load_dwordx4 {vr(96)}, v27, s[28:31], 0 offen\nbuffer_load_dwordx4 {vr(100)}, v27, s[28:31], 0 offen offset:1024")
    return 27

def k1_prep_compute(a, newer):
    a(f"s_waitcnt vmcnt({newer+6})")
    a("v_sub_u32 v26, 0x7f8, v23\nv_lshlrev_b32 v26, 1, v26\nv_lshl_add_u32 v26, v22, 12, v26")
    a(f"v_add_u32 v26, {hex(WS_UR)}, v26")
    KU, TP, RES, VU, OUT = 110, 132, 140, 156, 160
    for d in range(2):
        for r in range(11): unpack(a, KU+2*r, KU+2*r+1, 32+2*r+d)
        for half in range(2):
            for c in range(2):
                src = 70 + 4*d + 2*c + half
                a(f"v_lshlrev_b32 v{TP+4*half+c}, 16, v{src}\nv_and_b32 v{TP+4*half+2+c}, 0xffff0000, v{src}")
        for t in range(8):
            res = vr(RES+2*t, 2)
            unpack(a, VU, VU+1, 54+2*t+d)
            a(f"v_pk_mul_f32 {res}, {vr(KU+2*(t+0),2)}, {vr(TP+6,2)}")
            a(f"v_pk_fma_f32 {res}, {vr(KU+2*(t+1),2)}, {vr(TP+4,2)}, {res}")
            a(f"v_pk_fma_f32 {res}, {vr(KU+2*(t+2),2)}, {vr(TP+2,2)}, {res}")
            a(f"v_pk_fma_f32 {res}, {vr(KU+2*(t+3),2)}, {vr(TP+0,2)}, {res}")
            a(f"v_pk_mul_f32 {res}, {res}, {vr(VU,2)}")
        for c in range(2):
            o = OUT + 8*d + 4*c
            for i in range(4):
                a(f"v_cvt_pk_bf16_f32 v{o+i}, v{RES+2*(7-2*i)+c}, v{RES+2*(6-2*i)+c}")
            a(f"s_mov_b32 s46, {(2*d+c)*4096}")
            a(f"buffer_store_dwordx4 {vr(o)}, v26, s[12:15], s46 offen")
    a(f"s_waitcnt vmcnt({newer+4})")
    WU, XU, P, AC = 110, 126, 128, 132
    for j in range(8): unpack(a, WU+2*j, WU+2*j+1, 96+j)
    for r in range(2):
        for j in range(8):
            unpack(a, XU, XU+1, 80+8*r+j)
            a(f"v_pk_mul_f32 {vr(P,2)}, {vr(XU,2)}, {vr(WU+2*j,2)}")
            a(f"v_cvt_pk_bf16_f32 v{P+2}, v{P}, v{P+1}")
            if j == 0:
                unpack(a, AC+2*r, AC+2*r+1, P+2)
            else:
                unpack(a, P, P+1, P+2)
                a(f"v_pk_add_f32 {vr(AC+2*r,2)}, {vr(AC+2*r,2)}, {vr(P,2)}")
    for r in range(2): a(f"v_add_f32 v{AC+2*r}, v{AC+2*r}, v{AC+2*r+1}")
    for m in ("row_shr:1 row_mask:0xf bank_mask:0xf bound_ctrl:0", "row_shr:2 row_mask:0xf bank_mask:0xf bound_ctrl:0",
              "row_shr:4 row_mask:0xf bank_mask:0xf bound_ctrl:0", "row_shr:8 row_mask:0xf bank_mask:0xf bound_ctrl:0",
              "row_bcast:15 row_mask:0xa bank_mask:0xf", "row_bcast:31 row_mask:0xc bank_mask:0xf"):
        for r in range(2): a(f"v_add_f32_dpp v{AC+2*r}, v{AC+2*r}, v{AC+2*r} {m}")
    G = 136
    a(f"v_cvt_pk_bf16_f32 v{P}, v{AC}, v{AC+2}")
    unpack(a, AC, AC+2, P)
    for r in range(2):
        s = AC + 2*r
        a(f"v_mul_f32 v{s}, {hex(NLOG2E)}, v{s}\nv_exp_f32 v{s}, v{s}\nv_add_f32 v{s}, 1.0, v{s}\nv_rcp_f32 v{s}, v{s}")
    a(f"v_cvt_pk_bf16_f32 v{P}, v{AC}, v{AC+2}")
    unpack(a, G, G+2, P)
    a(f"v_sub_f32 v{AC}, 1.0, v{G}\nv_sub_f32 v{AC+2}, 1.0, v{G+2}")
    a(f"v_cvt_pk_bf16_f32 v{P}, v{AC}, v{AC+2}")
    unpack(a, G+1, G+3, P)
    a(f"s_lshl_b32 s46, s69, 3\ns_add_u32 s46, s46, {hex(WS_G)}\nv_mov_b32 v27, 0")
    a("s_mov_b32 exec_lo, 0\ns_mov_b32 exec_hi, 0x80000000")
    a(f"buffer_store_dwordx4 {vr(G)}, v27, s[12:15], s46 offen")
    a("s_mov_b64 exec, -1")
    a(f"s_lshl_b32 s46, s2, 8\ns_add_u32 s46, s46, {hex(WS_FLG)}\ns_cmp_lt_u32 s2, 16\ns_cselect_b32 s46, s46, s68")
    a("buffer_store_dword v27, v27, s[12:15], s46 offen")

def k1_epilogue(a):
    st = K1OPT.get("hflags", "")
    a("s_nop 7")
    a(f"s_mov_b32 s46, {hex(NLOG2E)}\ns_mov_b32 s47, {hex(NLOG2E)}")
    a(f"s_lshr_b32 s70, s{S_NB}, 1\ns_mul_i32 s70, s70, 7\ns_and_b32 s71, s{S_NB}, 1")
    a(f"s_add_u32 s72, s70, 3")
    a(f"s_lshl_b32 s73, s71, 2\ns_add_u32 s70, s70, s73")
    a(f"s_lshl_b32 s73, s{S_MB}, 4\ns_lshl_b32 s74, s{S_W}, 2\ns_add_u32 s73, s73, s74\ns_lshl_b32 s73, s73, 10")
    a("s_lshl_b32 s70, s70, 17\ns_add_u32 s70, s70, s73\ns_add_u32 s75, s70, 0x20000\ns_add_u32 s76, s70, 0x40000")
    a("s_lshl_b32 s72, s72, 17\ns_add_u32 s72, s72, s73\ns_lshl_b32 s71, s71, 9\ns_add_u32 s72, s72, s71")
    a("v_lshlrev_b32 v3, 4, v2")
    a("v_and_b32 v4, 31, v2\nv_lshlrev_b32 v4, 4, v4\nv_lshrrev_b32 v5, 5, v2\nv_lshl_add_u32 v4, v5, 10, v4")
    T = 8
    def silu4(g, u, t):
        a(f"v_pk_mul_f32 {vr(t,2)}, {vr(g,2)}, s[46:47]\nv_pk_mul_f32 {vr(t+2,2)}, {vr(g+2,2)}, s[46:47]")
        for r in range(4): a(f"v_exp_f32 v{t+r}, v{t+r}")
        a(f"v_pk_mul_f32 {vr(u,2)}, {vr(u,2)}, {vr(g,2)}\nv_pk_mul_f32 {vr(u+2,2)}, {vr(u+2,2)}, {vr(g+2,2)}")
        a(f"v_pk_add_f32 {vr(t,2)}, {vr(t,2)}, 1.0 op_sel_hi:[1,0]\nv_pk_add_f32 {vr(t+2,2)}, {vr(t+2,2)}, 1.0 op_sel_hi:[1,0]")
        for r in range(4): a(f"v_rcp_f32 v{t+r}, v{t+r}")
        a(f"v_pk_mul_f32 {vr(u,2)}, {vr(u,2)}, {vr(t,2)}\nv_pk_mul_f32 {vr(u+2,2)}, {vr(u+2,2)}, {vr(t+2,2)}")
    k = 0
    for u in range(3):
        for i in range(4):
            o = 16 + 4*(k % 4); k += 1
            for h in range(2):
                tau = 2*u + h
                g_, u_ = acc(0, tau, i), acc(1, tau, i)
                silu4(g_, u_, T + 4*h)
                a(f"v_cvt_pk_bf16_f32 v{o+2*h}, v{u_}, v{u_+1}\nv_cvt_pk_bf16_f32 v{o+2*h+1}, v{u_+2}, v{u_+3}")
            a(f"buffer_store_dwordx4 {vr(o)}, v3, s[12:15], s{[70,75,76][u]} offen offset:{i*1024} {st}")
    for i in (0, 2):
        o = 16 + 4*(k % 4); k += 1
        for h in range(2):
            g_, u_ = acc(0, 6, i+h), acc(1, 6, i+h)
            silu4(g_, u_, T + 4*h)
            a(f"v_cvt_pk_bf16_f32 v{o+2*h}, v{u_}, v{u_+1}\nv_cvt_pk_bf16_f32 v{o+2*h+1}, v{u_+2}, v{u_+3}")
        a(f"v_permlane32_swap_b32 v{o}, v{o+2}\nv_permlane32_swap_b32 v{o+1}, v{o+3}")
        a(f"buffer_store_dwordx4 {vr(o)}, v4, s[12:15], s72 offen offset:{i*1024} {st}")

K1OPT = {}
def gen_k1(opt):
    global K1OPT
    K1OPT = opt
    a = Asm()
    name = "k1_kernel"
    a(f".globl {name}\n.p2align 8\n.type {name},@function")
    a.label(name)
    a("s_cmp_ge_u32 s2, 256\ns_cbranch_scc1 L_k1_end")
    stamp(a, opt, 0)
    a("s_load_dwordx4 s[48:51], s[0:1], 0")
    a("s_load_dwordx4 s[52:55], s[0:1], 16")
    a("s_load_dwordx4 s[56:59], s[0:1], 56")
    a("s_load_dwordx2 s[60:61], s[0:1], 80")
    a("s_load_dwordx2 s[62:63], s[0:1], 104")
    a("v_lshrrev_b32 v1, 6, v0\nv_and_b32 v2, 63, v0")
    a(f"v_readfirstlane_b32 s{S_W}, v1")
    a("s_and_b32 s46, s2, 7\ns_lshr_b32 s47, s2, 3")
    a(f"s_lshr_b32 s{S_MB}, s47, 2")
    a(f"s_and_b32 s47, s47, 3\ns_lshl_b32 s46, s46, 2\ns_add_u32 s{S_NB}, s46, s47")
    a(f"s_mov_b32 s68, {hex(OOB)}\ns_movk_i32 s46, 0x78")
    a("v_lshrrev_b32 v3, 2, v2\nv_lshrrev_b32 v20, 4, v2\nv_lshlrev_b32 v20, 1, v20\nv_bfe_u32 v20, s46, v20, 2")
    a("v_and_b32 v21, 3, v2\nv_xor_b32 v21, v21, v20\nv_lshlrev_b32 v21, 4, v21")
    a(f"v_lshl_add_u32 v{XOFF}, v3, 11, v21")
    for i in range(1, 4): a(f"v_add_u32 v{XOFF+i}, {i*32768}, v{XOFF}")
    a("v_bfe_u32 v20, v2, 2, 2\nv_lshlrev_b32 v20, 1, v20\nv_bfe_u32 v20, s46, v20, 2\nv_lshrrev_b32 v21, 4, v2\nv_xor_b32 v21, v21, v20")
    a(f"v_and_b32 v20, 15, v2\nv_lshlrev_b32 v20, 6, v20\nv_lshl_add_u32 v{RLANE}, v21, 4, v20")
    a(f"s_lshl_b32 s{S_XL}, s{S_W}, 12\nv_add_u32 v{RLANE}, s{S_XL}, v{RLANE}")
    a("v_mul_u32_u24 v20, 192, v3\nv_and_b32 v21, 3, v2\nv_lshlrev_b32 v21, 3, v21\nv_add_u32 v20, v20, v21")
    a("v_bfe_u32 v22, v2, 4, 1\nv_lshlrev_b32 v22, 5, v22")
    a(f"v_add_u32 v{RLANE+1}, v20, v22\nv_xor_b32 v22, 32, v22\nv_add_u32 v{RLANE+2}, v20, v22")
    a(f"v_lshl_add_u32 v{RLANE+3}, v3, 5, v21")
    a(f"s_and_b32 s46, s{S_W}, 1\ns_lshr_b32 s47, s{S_W}, 1\ns_and_b32 s69, s{S_NB}, 1")
    a(f"s_mul_i32 s{S_WL}, s47, 7168\ns_add_u32 s{S_WL}, s{S_WL}, 16384\ns_add_u32 s{S_TL}, s{S_WL}, 6144")
    a(f"s_mul_i32 s70, s46, 3072\ns_add_u32 s{S_WL}, s{S_WL}, s70")
    a("s_mul_i32 s70, s46, 48")
    a(f"s_mul_i32 s71, s{S_NB}, 224\ns_lshl_b32 s72, s69, 5\ns_add_u32 s72, s72, s71")
    a("s_movk_i32 s73, 7168")
    def krow(sig, dst, t):
        a(f"v_and_b32 v{dst}, 3, v{sig}\nv_bfe_u32 v{t}, v{sig}, 2, 2\nv_lshl_add_u32 v{dst}, v{t}, 3, v{dst}")
        a(f"v_lshrrev_b32 v{t}, 4, v{sig}\nv_lshl_add_u32 v{dst}, v{t}, 2, v{dst}")
    for j in range(3):
        a(f"v_add_u32 v20, s70, v3\nv_add_u32 v20, {16*j}, v20")
        a("v_mul_u32_u24 v21, 43, v20\nv_lshrrev_b32 v21, 7, v21")
        a("v_mul_u32_u24 v22, 3, v21\nv_sub_u32 v22, v20, v22")
        a("v_bfe_u32 v23, v21, 2, 1\nv_bfe_u32 v24, v2, 1, 1\nv_xor_b32 v23, v23, v24")
        a("v_lshlrev_b32 v22, 6, v22\nv_lshl_add_u32 v22, v23, 5, v22")
        a("v_and_b32 v23, 1, v2\nv_lshl_add_u32 v22, v23, 4, v22\nv_add_u32 v22, s72, v22")
        krow(21, 23, 24)
        a(f"v_mad_u32_u24 v{WOFF+j}, v23, s73, v22")
    a("s_cmp_eq_u32 s69, 0\ns_cselect_b32 s74, 192, 0\ns_add_u32 s74, s74, s71")
    a("v_lshrrev_b32 v21, 1, v2\nv_and_b32 v23, 1, v2\nv_lshlrev_b32 v22, 4, v23\nv_add_u32 v22, s74, v22")
    krow(21, 23, 24)
    a(f"v_mad_u32_u24 v{WOFF+3}, v23, s73, v22")
    a("s_cmp_eq_u32 s46, 0\ns_cselect_b32 s44, -1, 0\ns_cselect_b32 s45, 0, -1")
    a("s_waitcnt lgkmcnt(0)")
    srd(a, 4, 48, 0x400000)
    a("s_cmp_eq_u32 s47, 0\ns_cselect_b32 s8, s56, s58\ns_cselect_b32 s9, s57, s59\ns_mov_b32 s10, 0x700000\ns_mov_b32 s11, 0x00020000")
    srd(a, 12, 62, WS_END)
    srd(a, 16, 50, 0x400000); srd(a, 20, 52, 0x400000); srd(a, 24, 54, 8192); srd(a, 28, 60, 2048)
    a(f"s_lshl_b32 s{S_X}, s{S_MB}, 8\ns_lshl_b32 s46, s{S_W}, 6\ns_add_u32 s{S_X}, s{S_X}, s46\ns_lshl_b32 s{S_X}, s{S_X}, 11")
    a(f"s_mov_b32 s{S_WO}, 0\ns_mov_b32 s{S_DSLOT}, 0\ns_mov_b32 s{S_RSLOT}, 0")
    if opt.get("fake"): a(f"s_mov_b32 s79, 0\ns_mov_b32 s77, s{S_X}")
    k1_prep_loads(a)
    for st in range(NSLOT):
        a(f"s_mov_b32 s{S_XE}, s{S_X}\ns_mov_b32 s{S_WE}, s{S_WO}")
        k1_dma_setup(a)
        for d in (0, 4, 1, 5, 2, 6, 3, 7): a(k1_dma(a, d))
        if st < NSLOT - 1: k1_dma_advance(a)
    stamp(a, opt, 1)
    k1_prep_compute(a, 40)
    stamp(a, opt, 2)
    for j in range(4): a(f"v_mov_b32 v{RBASE+j}, v{RLANE+j}")
    a("s_waitcnt vmcnt(38)\ns_barrier")
    stamp(a, opt, 3)
    if opt.get("prof"): a("s_memtime s[96:97]")
    lg = Q(a, "lgkmcnt", 15)
    seq = x_read(0, 0, ("X", 0, 0)) + w_read(a, lg, 0, ("W", 0, 0)) + x_read(0, 1, ("X", 1, 0)) + x_read(0, 2, ("X", 2, 0)) + x_read(0, 3, ("X", 3, 0))
    for w in range(1, 5): seq += w_read(a, lg, w, ("W", w, 0))
    for t, tag in seq: a(t); lg.push(tag)
    carry = k1_step(a, lg, 0, True, [])
    carry = k1_step(a, lg, 1, False, carry)
    a(f"s_mov_b32 s{S_IT}, 1")
    a(".p2align 6")
    a.label("L_k1_loop")
    n0 = len(a.lines)
    carry = k1_step(a, lg, 0, False, carry)
    carry = k1_step(a, lg, 1, False, carry)
    body = a.lines[n0:]
    b = Asm(); lg.a = b
    import copy
    k1_step(b, lg, 0, False, carry); k1_step(b, lg, 1, False, carry)
    assert b.lines == body, "loop body not steady"
    a(f"s_add_u32 s{S_IT}, s{S_IT}, 1\ns_cmp_lt_u32 s{S_IT}, 16\ns_cbranch_scc1 L_k1_loop")
    stamp(a, opt, 4)
    if opt.get("prof"): a("s_memtime s[98:99]")
    k1_epilogue(a)
    stamp(a, opt, 5)
    stamp_flush(a, opt, 6, "s[12:15]", S_W, 0, 4)
    a.label("L_k1_end")
    a("s_endpgm")
    desc = f"""
.p2align 6
.amdhsa_kernel {name}
  .amdhsa_next_free_vgpr 320
  .amdhsa_next_free_sgpr 102
  .amdhsa_accum_offset 256
  .amdhsa_group_segment_fixed_size 0
  .amdhsa_kernarg_size 112
  .amdhsa_user_sgpr_count 2
  .amdhsa_user_sgpr_kernarg_segment_ptr 1
  .amdhsa_system_sgpr_workgroup_id_x 1
.end_amdhsa_kernel
"""
    return a.lines, desc, f"; @launch kernel={name} grid=(256,1,1) block=(256,1,1) lds={SLOT*NSLOT}"
```

```python
from asmb import *
from k1 import Q, srd, vr, ar, unpack, stamp, stamp_flush, WS_H, WS_UR, WS_Y2, WS_G, WS_FLG, WS_END, OOB

RING = 14
L_RING = 0
L_CONV = RING*4096
CSTR = 4160
C_U = 4*CSTR
CAREA = C_U + 4608
L_STG = L_CONV + 4*CAREA
L_FLG = L_STG + 16384
LDS_TOTAL = L_FLG + 64
HD = 7
DLEAD = 11
S_W = 32

ACC = 32
def acc(j, i): return ACC + (j*2 + i)*4
def wf(par, j): return par*16 + j*4
def hf(s, i): return 32 + (s % HD)*8 + i*4
S_H, S_WN, S_WD, S_ML, S_IT, S_T = 33, 34, 35, 36, 37, 38
Y2R, QR, GR = 64, 80, 96

def h_load(a, vm, s):
    for i in range(2):
        a(f"buffer_load_dwordx4 {ar(hf(s, i))}, v3, s[4:7], s{S_H} offen offset:{i*1024}"); vm.push(("H", s))
    a(f"s_add_u32 s{S_H}, s{S_H}, 0x20000")
def w_dma_pre(a, s):
    a(f"s_add_u32 m0, s{S_ML}, {(s % RING)*4096}")
    if s % 7 == 3: a(f"s_add_u32 s{S_T}, s{S_WN}, s{S_WD}")
def w_dma(a, vm, s):
    so = S_T if s % 7 == 3 else S_WN
    a(f"buffer_load_dwordx4 v4, s[8:11], s{so} offen lds"); vm.push(("D", s))
    a(f"s_add_u32 s{S_WN}, s{S_WN}, 0x10000")
def tr_reads(s):
    r = []
    for j in range(4):
        b = wf(s & 1, j); o = (s % RING)*4096
        r.append((f"ds_read_b64_tr_b16 {ar(b,2)}, v{5+j} offset:{o}", ("W", s, j)))
        r.append((f"ds_read_b64_tr_b16 {ar(b+2,2)}, v{5+j} offset:{o+2048}", ("W", s, j)))
    return r

class G2:
    def __init__(self, a, opt):
        self.a, self.opt = a, opt
        self.vm = Q(a, "vmcnt", 63); self.lg = Q(a, "lgkmcnt", 15)
        self.slow = []; self.uid = 0
    def arrive(self):
        a = self.a
        a("v_add_u32 v11, 1, v11\nds_write_b32 v9, v11"); self.lg.push("FW")
    def flagread(self):
        self.a("ds_read_b128 v[12:15], v10"); self.lg.push("FR")
    def check(self, tagname):
        a = self.a
        self.lg.wait("FR")
        a("v_min3_u32 v16, v12, v13, v14\nv_min_u32 v16, v16, v15\nv_cmp_gt_u32 vcc, v11, v16")
        a(f"s_cbranch_vccnz L_slow_{tagname}")
        a.label(f"L_back_{tagname}")
        self.slow.append(tagname)
    def emit_slow(self):
        a = self.a
        for t in self.slow:
            a.label(f"L_slow_{t}")
            a("s_mov_b32 s39, 0")
            a.label(f"L_slow2_{t}")
            a("ds_read_b128 v[12:15], v10\ns_add_u32 s39, s39, 1\ns_cmp_ge_u32 s39, 0x100000\ns_waitcnt lgkmcnt(0)")
            a(f"s_cbranch_scc1 L_back_{t}")
            a("v_min3_u32 v16, v12, v13, v14\nv_min_u32 v16, v16, v15\nv_cmp_gt_u32 vcc, v11, v16")
            a(f"s_cbranch_vccnz L_slow2_{t}\ns_branch L_back_{t}")
    def step(self, s, tagp, extra=None):
        a, vm, lg = self.a, self.vm, self.lg
        last = 111
        slots = {i: [] for i in range(-1, 8)}
        if s % 2 == 0: vm.wait(("H", s), ("D", s+2), ("D", s+3))
        else: vm.wait(("H", s))
        if s % 2 == 0 and s + 2 <= last:
            slots[-1].append(self.arrive); slots[3].append(self.flagread)
        if s % 2 == 1 and s + 1 <= last:
            slots[-1].append(lambda: self.check(f"{tagp}_{s % 14}"))
        rd = tr_reads(s + 1) if s + 1 <= last else []
        for n, r in enumerate(rd): slots[n].append(r)
        if s + HD <= last: slots[7].append(lambda: h_load(a, vm, s + HD))
        if s + DLEAD <= last:
            slots[1].append(lambda: w_dma_pre(a, s + DLEAD)); slots[2].append(lambda: w_dma(a, vm, s + DLEAD))
        for k, f in (extra or {}).items(): slots[k].append(f)
        def run(k):
            for it in slots[k]:
                if isinstance(it, tuple): a(it[0]); lg.push(it[1])
                else: it()
        run(-1)
        for n in range(8):
            j, i = divmod(n, 2)
            if j & 1: i = 1 - i
            lg.wait(("W", s, j))
            d = vr(acc(j, i))
            a(f"v_mfma_f32_16x16x32_bf16 {d}, {ar(wf(s & 1, j))}, {ar(hf(s, i))}, {'0' if s == 0 else d}")
            run(n)

def gen_gemm(a, opt):
    g = G2(a, opt); vm, lg = g.vm, g.lg
    if opt.get("prio", 1): a("s_setprio 1")
    a("s_and_b32 s40, s2, 7\ns_lshr_b32 s41, s2, 3\ns_lshr_b32 s42, s40, 1\ns_lshl_b32 s42, s42, 2\ns_lshr_b32 s43, s41, 3\ns_add_u32 s42, s42, s43")
    a("s_and_b32 s40, s40, 1\ns_lshl_b32 s40, s40, 3\ns_and_b32 s41, s41, 7\ns_add_u32 s43, s40, s41")
    a(f"s_lshl_b32 s44, s42, 3\ns_lshl_b32 s45, s{S_W}, 1\ns_add_u32 s44, s44, s45\ns_lshl_b32 s{S_H}, s44, 10")
    a("v_lshlrev_b32 v3, 4, v2")
    a("v_lshrrev_b32 v16, 3, v2\nv_bfe_u32 v17, v2, 4, 2\nv_bfe_u32 v18, v2, 1, 2\nv_xor_b32 v17, v17, v18\nv_lshlrev_b32 v17, 5, v17")
    a("v_and_b32 v18, 1, v2\nv_lshl_add_u32 v17, v18, 4, v17\nv_lshl_add_u32 v4, v16, 11, v17\ns_lshl_b32 s45, s43, 7\nv_add_u32 v4, s45, v4")
    a(f"s_lshr_b32 s45, s{S_W}, 1\ns_and_b32 s46, s{S_W}, 1\ns_lshl_b32 s{S_WN}, s{S_W}, 14")
    a(f"s_sub_u32 s47, s46, s45\ns_lshl_b32 s{S_WD}, s47, 14")
    a(f"s_lshl_b32 s{S_ML}, s{S_W}, 10")
    a("v_lshrrev_b32 v16, 2, v2\nv_lshlrev_b32 v16, 7, v16\nv_and_b32 v17, 3, v2\nv_lshl_add_u32 v16, v17, 3, v16\nv_bfe_u32 v17, v2, 3, 2")
    for j in range(4): a(f"v_xor_b32 v18, {j}, v17\nv_lshl_add_u32 v{5+j}, v18, 5, v16")
    a(f"s_lshl_b32 s45, s{S_W}, 2\ns_add_u32 s45, s45, {L_FLG}\nv_mov_b32 v9, s45\nv_mov_b32 v10, {L_FLG}\nv_mov_b32 v11, 0")
    a("v_lshrrev_b32 v16, 2, v2\nv_lshlrev_b32 v16, 12, v16\nv_and_b32 v17, 3, v2\nv_lshl_add_u32 v20, v17, 4, v16")
    a(f"s_lshl_b32 s48, s43, 18\ns_lshl_b32 s45, s44, 5\ns_add_u32 s48, s48, s45\ns_add_u32 s48, s48, {hex(WS_Y2)}")
    a("v_and_b32 v16, 15, v2\nv_lshlrev_b32 v21, 11, v16\nv_lshrrev_b32 v17, 4, v2\nv_lshl_add_u32 v22, v17, 3, v21")
    a("v_and_b32 v18, 1, v17\nv_lshlrev_b32 v18, 5, v18\nv_lshrrev_b32 v17, 1, v17\nv_lshl_add_u32 v18, v17, 4, v18\nv_add_u32 v23, v21, v18")
    a("s_lshl_b32 s49, s44, 15\ns_lshl_b32 s45, s43, 7\ns_add_u32 s49, s49, s45\ns_add_u32 s50, s49, 0x8000")
    a(f"v_lshlrev_b32 v24, 3, v16\ns_lshl_b32 s51, s44, 7\ns_add_u32 s51, s51, {hex(WS_G)}")
    a(f"s_lshl_b32 s52, s43, 8\ns_add_u32 s52, s52, {hex(WS_FLG)}\nv_mov_b32 v25, 0")
    for s in range(DLEAD):
        if s < HD: h_load(a, vm, s)
        w_dma_pre(a, s); w_dma(a, vm, s)
    stamp(a, opt, 1)
    vm.wait(("D", 0), ("D", 1), ("D", 2), ("D", 3))
    g.arrive(); g.flagread(); g.check("pro")
    for t, tag in tr_reads(0): a(t); lg.push(tag)
    stamp(a, opt, 2)
    if opt.get("prof"): a("s_memtime s[96:97]")
    for s in range(14): g.step(s, "a")
    a(f"s_mov_b32 s{S_IT}, 1")
    a(".p2align 6")
    a.label("L_k2_loop")
    n0 = len(a.lines)
    for s in range(14, 28): g.step(s, "b")
    body = a.lines[n0:]
    b = Asm(); g.a = vm.a = lg.a = b; ns = len(g.slow)
    for s in range(28, 42): g.step(s, "b")
    assert b.lines == body, "k2 loop not steady"
    g.slow = g.slow[:ns]; g.a = vm.a = lg.a = a
    sh = 84 - 42
    vm.q = [(t[0], t[1] + sh) if isinstance(t, tuple) else t for t in vm.q]
    lg.q = [(t[0], t[1] + sh, t[2]) if isinstance(t, tuple) else t for t in lg.q]
    a(f"s_add_u32 s{S_IT}, s{S_IT}, 1\ns_cmp_lt_u32 s{S_IT}, 6\ns_cbranch_scc1 L_k2_loop")
    def poll():
        a("buffer_load_dword v26, v25, s[12:15], s52 offen sc1"); vm.push("P")
    def epi_loads():
        vm.wait("P")
        a("v_cmp_gt_u32 vcc, 16, v26\ns_cbranch_vccnz L_k2_spin")
        a.label("L_k2_spun")
        for j in range(4):
            a(f"s_add_u32 s45, s48, {j*65536}\nbuffer_load_dwordx4 {vr(Y2R+4*j)}, v20, s[12:15], s45 offen sc1"); vm.push("Y")
    def epi_loads2():
        for i in range(2):
            for j in range(4):
                a(f"buffer_load_dwordx2 {vr(QR+(j*2+i)*2, 2)}, v22, s[16:19], s{49+i} offen offset:{32*j}"); vm.push("Qd")
            a(f"buffer_load_dwordx2 {vr(GR+2*i, 2)}, v24, s[12:15], s51 offen offset:{128*i}"); vm.push("Gd")
    for s in range(84, 112):
        ex = {}
        if s == 88: ex[5] = poll
        if s == 98: ex[5] = epi_loads
        if s == 102: ex[5] = epi_loads2
        g.step(s, "c" if s < 98 else "d", ex)
    stamp(a, opt, 3)
    if opt.get("prof"): a("s_memtime s[98:99]")
    a(f"s_lshl_b32 s45, s{S_W}, 12\ns_add_u32 s45, s45, {L_STG}\nv_add_u32 v3, s45, v3")
    a("v_lshrrev_b32 v16, 2, v2\nv_lshlrev_b32 v16, 6, v16\nv_and_b32 v17, 3, v2\nv_lshl_add_u32 v16, v17, 3, v16\nv_add_u32 v16, s45, v16")
    vm.wait("Y")
    for j in range(4): a(f"ds_write_b128 v3, {vr(Y2R+4*j)} offset:{1024*j}")
    a("s_waitcnt lgkmcnt(0)")
    for j in range(4):
        for i in range(2): a(f"ds_read_b64_tr_b16 {vr(Y2R+(j*2+i)*2, 2)}, v16 offset:{1024*j+32*i}")
    a("s_waitcnt vmcnt(0) lgkmcnt(0)")
    T = 100
    for i in range(2):
        for jp in (0, 2):
            o = 112 + 4*(i*2 + jp//2)
            for h in range(2):
                j = jp + h
                y, q, c = Y2R + (j*2+i)*2, QR + (j*2+i)*2, acc(j, i)
                unpack(a, T, T+1, y); unpack(a, T+2, T+3, y+1); unpack(a, T+4, T+5, q); unpack(a, T+6, T+7, q+1)
                a(f"v_pk_mul_f32 {vr(T,2)}, {vr(T,2)}, {vr(T+4,2)}\nv_pk_mul_f32 {vr(T+2,2)}, {vr(T+2,2)}, {vr(T+6,2)}")
                gg = vr(GR+2*i, 2)
                a(f"v_pk_mul_f32 {vr(c,2)}, {vr(c,2)}, {gg} op_sel:[0,1] op_sel_hi:[1,1]\nv_pk_mul_f32 {vr(c+2,2)}, {vr(c+2,2)}, {gg} op_sel:[0,1] op_sel_hi:[1,1]")
                a(f"v_pk_fma_f32 {vr(c,2)}, {vr(T,2)}, {gg}, {vr(c,2)} op_sel_hi:[1,0,1]\nv_pk_fma_f32 {vr(c+2,2)}, {vr(T+2,2)}, {gg}, {vr(c+2,2)} op_sel_hi:[1,0,1]")
                a(f"v_cvt_pk_bf16_f32 v{o+2*h}, v{c}, v{c+1}\nv_cvt_pk_bf16_f32 v{o+2*h+1}, v{c+2}, v{c+3}")
            a(f"v_permlane16_swap_b32 v{o}, v{o+2}\nv_permlane16_swap_b32 v{o+1}, v{o+3}")
            a(f"buffer_store_dwordx4 {vr(o)}, v23, s[20:23], s{49+i} offen offset:{32*jp}")
    stamp(a, opt, 4)
    stamp_flush(a, opt, 5, "s[12:15]", S_W, 0x20000, 8)
    a("s_endpgm")
    g.emit_slow()
    a.label("L_k2_spin")
    a("s_mov_b32 s45, 0")
    a.label("L_k2_spin2")
    a("s_sleep 2\nbuffer_load_dword v26, v25, s[12:15], s52 offen sc1\ns_waitcnt vmcnt(0)")
    a("s_add_u32 s45, s45, 1\ns_cmp_ge_u32 s45, 0x40000\ns_cbranch_scc1 L_k2_spun")
    a("v_cmp_gt_u32 vcc, 16, v26\ns_cbranch_vccnz L_k2_spin2\ns_branch L_k2_spun")

def gen_conv(a, opt):
    lg = Q(a, "lgkmcnt", 15)
    a(f"s_sub_u32 s33, s{S_W}, 4\ns_lshl_b32 s34, s2, 2\ns_add_u32 s34, s34, s33")
    a(f"s_mul_i32 s35, s33, {CAREA}\ns_add_u32 s35, s35, {L_CONV}")
    a("s_lshl_b32 s36, s34, 12")
    a(f"v_lshlrev_b32 v3, 4, v2\nv_subrev_u32 v4, 32, v3\nv_mov_b32 v5, {hex(OOB)}\nv_cmp_gt_u32 vcc, 2, v2")
    a("v_cndmask_b32 v4, v4, v5, vcc\nv_mov_b32 v6, 0")
    a("buffer_load_dwordx2 v[8:9], v6, s[24:27], s36 offen")
    a("s_lshl_b32 s37, s34, 1\nbuffer_load_ushort v10, v6, s[28:31], s37 offen")
    a(f"s_add_u32 s37, s36, {hex(WS_UR)}")
    for q in range(4):
        a(f"s_add_u32 m0, s35, {C_U + q*1024}\ns_add_u32 s38, s37, {q*1024}\nbuffer_load_dwordx4 v3, s[12:15], s38 offen lds")
    a(f"s_add_u32 m0, s35, {C_U + 4096}\ns_mov_b32 exec_hi, 0\nbuffer_load_dwordx4 v5, s[12:15], 0 offen lds\ns_mov_b64 exec, -1")
    for r in range(4):
        a(f"s_add_u32 m0, s35, {r*CSTR}\ns_add_u32 s38, s36, {2*r}\nbuffer_load_dwordx4 v4, s[24:27], s38 offen lds")
        for q in range(1, 4):
            a(f"s_add_u32 m0, s35, {r*CSTR + q*1024}\ns_add_u32 s38, s36, {2*r + 1024*q - 32}\nbuffer_load_dwordx4 v3, s[24:27], s38 offen lds")
        a(f"s_add_u32 m0, s35, {r*CSTR + 4096}\ns_add_u32 s38, s36, {2*r + 4096 - 32}\ns_mov_b64 exec, 3\nbuffer_load_dwordx4 v3, s[24:27], s38 offen lds\ns_mov_b64 exec, -1")
    stamp(a, opt, 1)
    a("v_and_b32 v11, 15, v2\nv_lshrrev_b32 v12, 4, v2\nv_lshl_add_u32 v13, v12, 3, v11\nv_add_u32 v13, 1, v13")
    a(f"v_and_b32 v14, 3, v13\nv_sub_u32 v13, v13, v14\nv_mul_u32_u24 v14, {CSTR}, v14\nv_lshl_add_u32 v16, v13, 1, v14\nv_add_u32 v16, s35, v16")
    a(f"v_lshlrev_b32 v13, 5, v11\nv_lshlrev_b32 v14, 4, v12\nv_sub_u32 v17, v14, v13\nv_add_u32 v17, {C_U + 4064 - 3584}, v17\nv_add_u32 v17, s35, v17")
    a("s_waitcnt vmcnt(25)")
    a("v_mov_b32 v20, 0\nv_mov_b32 v21, 0\nv_lshlrev_b32 v13, 16, v8\nv_alignbit_b32 v14, v9, v8, 16")
    a("v_cmp_eq_u32 vcc, 3, v2\nv_cndmask_b32 v22, v20, v13, vcc\nv_cndmask_b32 v23, v20, v14, vcc")
    a("v_cmp_eq_u32 vcc, 1, v2\nv_cndmask_b32 v23, v23, v13, vcc\nv_cmp_eq_u32 vcc, 2, v2\nv_cndmask_b32 v23, v23, v8, vcc")
    a(f"v_mul_u32_u24 v13, {CSTR}, v2\nv_add_u32 v13, s35, v13")
    a("v_lshlrev_b32 v14, 3, v12\nv_add_u32 v14, v14, v11\nv_sub_u32 v14, 15, v14")
    a("v_and_b32 v15, 1, v14\nv_lshlrev_b32 v15, 4, v15\nv_lshlrev_b32 v15, v15, v10\nv_lshrrev_b32 v14, 1, v14")
    for d in range(4): a(f"v_cmp_eq_u32 vcc, {d}, v14\nv_cndmask_b32 v{24+d}, v20, v15, vcc")
    a("s_waitcnt vmcnt(0)\ns_mov_b64 exec, 15\nds_write_b128 v13, v[20:23] offset:16\ns_mov_b64 exec, -1")
    stamp(a, opt, 2)
    CA = 32
    A = lambda par, x: par*64 + x*4
    B = lambda par, x: par*64 + 32 + x*4
    def reads(rho):
        par = rho & 1; r = []
        for x in range(8):
            r.append((f"ds_read_b128 {ar(B(par, x))}, v17 offset:{512*(7-x) + 64*rho}", ("B", rho, x)))
            r.append((f"ds_read_b64 {ar(A(par, x), 2)}, v16 offset:{512*x + 64*rho}", ("A", rho, x)))
            r.append((f"ds_read_b64 {ar(A(par, x)+2, 2)}, v16 offset:{512*x + 64*rho + 8}", ("A", rho, x)))
        return r
    pend = reads(0)
    for t, tag in pend[:12]: a(t); lg.push(tag)
    pend = pend[12:]
    for rho in range(8):
        par = rho & 1
        nxt = reads(rho + 1) if rho < 7 else []
        prs = sorted([(x, y) for x in range(8) for y in range(8) if x + y <= 7], key=lambda p: (max(p), p[0]))
        seen = set()
        todo = pend + nxt[:12] if rho < 7 else pend
        pend = nxt[12:]
        n = 0
        for (x, y) in prs:
            j = x + y
            def mf(A_, B_):
                c = vr(CA+4*j) if (rho > 0 or j in seen) else "0"
                seen.add(j)
                a(f"v_mfma_f32_16x16x32_bf16 {vr(CA+4*j)}, {A_}, {B_}, {c}")
            lg.wait(("A", rho, x), ("B", rho, y))
            if rho == 0 and x == 0: mf("v[24:27]", ar(B(par, y)))
            mf(ar(A(par, x)), ar(B(par, y)))
            if todo:
                t, tag = todo.pop(0); a(t); lg.push(tag)
            n += 1
        assert not todo
    stamp(a, opt, 3)
    a("v_and_b32 v13, 1, v12\nv_lshlrev_b32 v13, 9, v13\nv_lshl_add_u32 v13, v11, 5, v13\nv_lshrrev_b32 v14, 1, v12\nv_lshl_add_u32 v13, v14, 4, v13")
    a(f"s_add_u32 s37, s36, {hex(WS_Y2)}")
    for jp in (0, 2, 4, 6):
        o = 64 + 2*jp
        for h in range(2):
            c = CA + 4*(jp + h)
            a(f"v_cvt_pk_bf16_f32 v{o+2*h}, v{c}, v{c+1}\nv_cvt_pk_bf16_f32 v{o+2*h+1}, v{c+2}, v{c+3}")
        a(f"v_permlane16_swap_b32 v{o}, v{o+2}\nv_permlane16_swap_b32 v{o+1}, v{o+3}")
        a(f"buffer_store_dwordx4 {vr(o)}, v13, s[12:15], s37 offen offset:{512*jp} sc0 sc1")
    a("s_waitcnt vmcnt(0)")
    a(f"v_mov_b32 v13, {L_FLG + 16}\nv_mov_b32 v14, 1\ns_mov_b64 exec, 1\nds_add_rtn_u32 v15, v13, v14\ns_waitcnt lgkmcnt(0)")
    a("v_readfirstlane_b32 s38, v15\ns_cmp_eq_u32 s38, 3\ns_cbranch_scc0 L_k2_cdone")
    a(f"s_lshr_b32 s38, s2, 4\ns_lshl_b32 s38, s38, 8\ns_add_u32 s38, s38, {hex(WS_FLG)}")
    a("buffer_atomic_add v14, v6, s[12:15], s38 offen sc1")
    a.label("L_k2_cdone")
    a("s_mov_b64 exec, -1")
    stamp(a, opt, 4)
    if opt.get("prof"): a("s_mov_b64 s[96:97], 0\ns_mov_b64 s[98:99], 0")
    stamp_flush(a, opt, 5, "s[12:15]", S_W, 0x20000, 8)
    a("s_endpgm")

def gen_k2(opt):
    a = Asm()
    name = "k2_kernel"
    a(f".globl {name}\n.p2align 8\n.type {name},@function")
    a.label(name)
    a("s_cmp_ge_u32 s2, 256\ns_cbranch_scc1 L_k2_end")
    stamp(a, opt, 0)
    a("s_load_dwordx2 s[48:49], s[0:1], 0")
    a("s_load_dwordx4 s[52:55], s[0:1], 32")
    a("s_load_dwordx2 s[56:57], s[0:1], 72")
    a("s_load_dwordx2 s[58:59], s[0:1], 88")
    a("s_load_dwordx2 s[60:61], s[0:1], 104")
    a("v_lshrrev_b32 v1, 6, v0\nv_and_b32 v2, 63, v0")
    a(f"v_readfirstlane_b32 s{S_W}, v1")
    a(f"v_mov_b32 v3, {L_FLG}\nv_mov_b32 v4, 0\nv_mov_b32 v5, 0\nv_mov_b32 v6, 0\nv_mov_b32 v7, 0")
    a("ds_write_b128 v3, v[4:7]\nds_write_b128 v3, v[4:7] offset:16")
    a("s_waitcnt lgkmcnt(0)")
    srd(a, 4, 60, 0xE00000); srd(a, 8, 56, 0x700000); srd(a, 12, 60, WS_END); srd(a, 16, 48, 0x400000); srd(a, 20, 58, 0x400000)
    srd(a, 24, 52, 0x400000); srd(a, 28, 54, 2048)
    a("s_barrier")
    a(f"s_cmp_ge_u32 s{S_W}, 4\ns_cbranch_scc1 L_k2_conv")
    gen_gemm(a, opt)
    a.label("L_k2_conv")
    gen_conv(a, opt)
    a.label("L_k2_end")
    a("s_endpgm")
    desc = f"""
.p2align 6
.amdhsa_kernel {name}
  .amdhsa_next_free_vgpr 256
  .amdhsa_next_free_sgpr 102
  .amdhsa_accum_offset 128
  .amdhsa_group_segment_fixed_size 0
  .amdhsa_kernarg_size 112
  .amdhsa_user_sgpr_count 2
  .amdhsa_user_sgpr_kernarg_segment_ptr 1
  .amdhsa_system_sgpr_workgroup_id_x 1
.end_amdhsa_kernel
"""
    return a.lines, desc, f"; @launch kernel={name} grid=(256,1,1) block=(512,1,1) lds={LDS_TOTAL}"
```

```python
import sys, os, json
sys.path.insert(0, os.path.dirname(__file__))
from asmb import *
import k1
def build(opt, kernels=("k1", "k2")):
    ref = open("gated_mix__ssm_conv_h3__swiglu_ffn__prompt.s.ref").read().split("\n")
    head = [l for l in ref if l.startswith(";   offset") or l.startswith("; Kernarg")]
    parts = []
    if "k1" in kernels: parts.append(k1.gen_k1(opt))
    if "k2" in kernels:
        import k2
        parts.append(k2.gen_k2(opt))
    out = head + [p[2] for p in parts]
    out += ['.amdgcn_target "amdgcn-amd-amdhsa--gfx950"', ".text"]
    for lines, desc, _ in parts:
        fixed = fix_hazards(lines)
        probs = check_backedges(fixed)
        assert not probs, probs
        out += [l if (l.endswith(":") or l.startswith(".")) else "    " + l for l in fixed]
    out.append('.section .rodata,"a"')
    out += [p[1] for p in parts]
    return "\n".join(out) + "\n"
if __name__ == "__main__":
    path = sys.argv[1]
    opt = json.loads(sys.argv[2]) if len(sys.argv) > 2 else {}
    ks = tuple(opt.get("kernels", ["k1", "k2"]))
    open(path, "w").write(build(opt, ks))
```
